```python
import torch

def _softmax(x, axis=-1):
    return torch.softmax(x, dim=axis)
def _gelu(x):
    return torch.nn.functional.gelu(x, approximate="tanh")
def _silu(x):
    return torch.nn.functional.silu(x)
def _sigmoid(x):
    return torch.sigmoid(x)
def _layernorm(x, axis=-1, eps=1e-5):
    m = x.mean(dim=axis, keepdim=True)
    v = x.var(dim=axis, keepdim=True, unbiased=False)
    return (x - m) / torch.sqrt(v + eps)
def _scatter_add(tgt, idx, src, axis=0):
    return tgt.clone().index_add_(axis, idx, src)
def _segment_sum(src, seg, n):
    out = torch.zeros((n,) + src.shape[1:], dtype=src.dtype)
    return out.index_add_(0, seg, src)
def _pad(x, pw):
    flat = tuple(v for pair in reversed(pw) for v in pair)
    return torch.nn.functional.pad(x, flat)

kernel_name = 'gated_mix__softmax_full_mha__dense_activation_silu__prompt'

def setup_inputs():

    _w = (lambda a: (lambda t: t.to(torch.bfloat16) if t.is_floating_point() else t)(torch.as_tensor(a)))
    def _A_setup():
        B, S, D = 1, 2048, 448
        return {
            "x": _w((lambda *s: torch.randn(*s, dtype=torch.bfloat16) * 0.05)(B, S, D)),
            "wqkv": _w((lambda *s: torch.randn(*s, dtype=torch.bfloat16) * 0.8)(D, 3 * D)),
            "wo": _w((lambda *s: torch.randn(*s, dtype=torch.bfloat16) * 0.05)(D, D)),
        }
    _A_in = _A_setup()

    def _B_setup():
        B, S, D, F = 1, 2048, 448, 1792
        return {
            "x": _w((lambda *s: torch.randn(*s, dtype=torch.bfloat16) * 0.05)(B, S, D)),
            "w1": _w((lambda *s: torch.randn(*s, dtype=torch.bfloat16) * 3.2)(D, F) * (D ** -0.5)),
            "w2": _w((lambda *s: torch.randn(*s, dtype=torch.bfloat16) * 0.8)(F, D) * (F ** -0.5)),
        }
    _B_in = _B_setup()

    return {
        "A_x": _A_in["x"],
        "A_wqkv": _A_in["wqkv"],
        "A_wo": _A_in["wo"],
        "B_x": _B_in["x"],
        "B_w1": _B_in["w1"],
        "B_w2": _B_in["w2"],
        "gate_w": _w((lambda *s: torch.randn(*s, dtype=torch.bfloat16) * 0.05)(448) * 16.0),
    }

def reference(A_x, A_wqkv, A_wo, B_x, B_w1, B_w2, gate_w):
    def _A_ref(x, wqkv, wo):
        B, S, D = x.shape
        H = 16; Dh = D // H
        qkv = (lambda x, *d: x.permute(*d))((x @ wqkv).reshape(B, S, 3, H, Dh), 2, 0, 3, 1, 4)
        q, k, v = qkv[0], qkv[1], qkv[2]
        scale = Dh ** -0.5
        scores = torch.einsum("bhqd,bhkd->bhqk", q, k) * scale
        p = _softmax(scores, axis=-1)
        o = torch.einsum("bhqk,bhkd->bhqd", p, v)
        return (lambda x, *d: x.permute(*d))(o, 0, 2, 1, 3).reshape(B, S, D) @ wo

    def _B_ref(x, w1, w2):
        h = torch.einsum("bsd,df->bsf", x, w1)
        h = _silu(h)
        out = torch.einsum("bsf,fd->bsd", h, w2)
        return out

    x = A_x
    g = _sigmoid((x * gate_w).sum(-1, keepdims=True))
    a = _A_ref(x, A_wqkv, A_wo)
    b = _B_ref(x, B_w1, B_w2)
    return g * a + (1 - g) * b
```

```python
import re

TRANS = ("v_exp_f32","v_log_f32","v_rcp_f32","v_rsq_f32","v_sqrt_f32","v_sin_f32","v_cos_f32","v_rcp_iflag_f32","v_exp_f16")

def _regs(tok):
    tok = tok.strip()
    tok = tok.lstrip('-')
    if tok.startswith('abs(') : tok = tok[4:-1]
    if tok.startswith('|'): tok = tok.strip('|')
    m = re.fullmatch(r'([vsa])(\d+)', tok)
    if m: return {(m.group(1), int(m.group(2)))}
    m = re.fullmatch(r'([vsa])\[(\d+):(\d+)\]', tok)
    if m: return {(m.group(1), i) for i in range(int(m.group(2)), int(m.group(3))+1)}
    if tok in ('vcc',): return {('vcc',0),('vcc',1)}
    if tok == 'vcc_lo': return {('vcc',0)}
    if tok == 'vcc_hi': return {('vcc',1)}
    if tok == 'exec': return {('exec',0),('exec',1)}
    if tok == 'exec_lo': return {('exec',0)}
    if tok == 'exec_hi': return {('exec',1)}
    if tok == 'm0': return {('m0',0)}
    return set()

class Ins:
    def __init__(self, text):
        self.text = text
        t = text.split(';')[0].strip()
        self.label = None
        self.op = None
        self.defs = set(); self.uses = set()
        self.kind = None
        self.ws = 1
        self.srcC = set(); self.srcAB = set(); self.data = set()
        self.target = None
        self.passes = 0
        if not t or t.startswith('.'):
            self.kind = 'dir'; self.ws = 0; return
        if t.endswith(':'):
            self.label = t[:-1]; self.kind = 'label'; self.ws = 0; return
        parts = t.split(None, 1)
        op = parts[0]; self.op = op
        rest = parts[1] if len(parts) > 1 else ''
        ops = []; depth = 0; cur = ''
        for ch in rest:
            if ch == '[': depth += 1
            if ch == ']': depth -= 1
            if ch == ',' and depth == 0:
                ops.append(cur.strip()); cur = ''
            else: cur += ch
        if cur.strip(): ops.append(cur.strip())
        mods = ''
        if ops:
            lp = ops[-1].split(None, 1)
            ops[-1] = lp[0]
            mods = lp[1] if len(lp) > 1 else ''
        self.ops = ops; self.mods = mods
        R = [_regs(o) for o in ops]
        if op == 's_nop':
            self.kind = 'nop'; self.ws = int(ops[0], 0) + 1; return
        if op.startswith('s_cbranch') or op == 's_branch':
            self.kind = 'branch'; self.target = ops[0]
            if 'vcc' in op: self.uses |= _regs('vcc')
            if 'exec' in op: self.uses |= _regs('exec')
            return
        if op == 's_endpgm': self.kind = 'end'; return
        if op in ('s_waitcnt','s_barrier','s_sleep','s_setprio'):
            self.kind = 'misc'; return
        if op.startswith('v_mfma'):
            self.kind = 'mfma'
            self.defs = R[0]; self.srcAB = R[1] | R[2]; self.srcC = R[3]
            self.uses = self.srcAB | self.srcC
            self.passes = 8 if '32x32x16' in op else 4
            return
        if op.startswith('buffer_') or op.startswith('global_'):
            self.kind = 'vmem'
            if op.startswith('buffer_load'):
                if ' lds' in (' ' + mods):
                    self.dma = True
                    self.uses = set().union(*R) | _regs('m0')
                else:
                    self.defs = R[0]; self.uses = set().union(*R[1:])
            elif op.startswith('buffer_store'):
                self.data = R[0]; self.uses = set().union(*R)
            elif op.startswith('buffer_atomic'):
                self.data = R[0]; self.uses = set().union(*R)
                if 'sc0' in mods: self.defs = R[0]
            elif op.startswith('global_load'):
                self.defs = R[0]; self.uses = set().union(*R[1:])
            elif op.startswith('global_store'):
                self.data = R[1]; self.uses = set().union(*R)
            else:
                self.uses = set().union(*R)
            return
        if op.startswith('ds_'):
            self.kind = 'ds'
            if op.startswith('ds_read') or op.startswith('ds_bpermute') or op.endswith('_rtn_u32') :
                self.defs = R[0]; self.uses = set().union(*R[1:])
            else:
                self.uses = set().union(*R)
            return
        if op.startswith('s_load') or op in ('s_memtime','s_memrealtime'):
            self.kind = 'smem'; self.defs = R[0]; self.uses = set().union(*R[1:]) if len(R) > 1 else set(); return
        if op.startswith('s_'):
            self.kind = 'salu'
            if op.startswith('s_cmp') or op.startswith('s_bitcmp'):
                self.uses = set().union(*R)
            else:
                self.defs = R[0]; self.uses = set().union(*R[1:]) if len(R) > 1 else set()
                if 'saveexec' in op: self.defs |= _regs('exec'); self.uses |= _regs('exec')
            return
        if op.startswith('v_'):
            self.kind = 'valu'
            self.trans = op.replace('_e32','').replace('_e64','') in TRANS
            self.dpp = ('row_' in mods or 'quad_perm' in mods or 'wave_' in mods or op.endswith('_dpp'))
            if op.startswith('v_permlane'):
                self.perm = True
                self.defs = R[0] | R[1]; self.uses = R[0] | R[1]; return
            if op.startswith('v_cmp'):
                self.defs = R[0]; self.uses = set().union(*R[1:]); return
            if op.startswith('v_readlane') or op.startswith('v_readfirstlane'):
                self.rl = True
                self.defs = R[0]; self.uses = set().union(*R[1:]); return
            if op.startswith('v_add_co') or op.startswith('v_sub_co') or op.startswith('v_addc_co'):
                self.defs = R[0] | R[1]; self.uses = set().union(*R[2:]); return
            self.defs = R[0]; self.uses = set().union(*R[1:]) if len(R) > 1 else set()
            if op.startswith('v_fmac') or op.startswith('v_writelane') or self.dpp or op.startswith('v_dot2c'):
                self.uses |= R[0]
            return
        raise ValueError("unknown instr: " + text)

def need(p, c):
    n = 0
    V = lambda s: {r for r in s if r[0] in ('v','a')}
    Sg = lambda s: {r for r in s if r[0] in ('s','vcc')}
    if p.kind == 'valu':
        pv = V(p.defs); ps = Sg(p.defs)
        if c.kind == 'mfma' and pv & c.uses: n = max(n, 2)
        if c.kind == 'valu':
            if getattr(c,'perm',False) and pv & c.uses: n = max(n, 2)
            if getattr(c,'rl',False) and pv & c.uses: n = max(n, 1)
            if getattr(c,'dpp',False) and pv & c.uses: n = max(n, 2)
            if getattr(p,'trans',False) and not getattr(c,'trans',False) and pv & (c.uses): n = max(n, 1)
            if ps & c.uses:
                n = max(n, 4 if getattr(c,'rl',False) or c.op.startswith('v_writelane') else 2)
        if c.kind == 'vmem' and ps & c.uses: n = max(n, 5)
        if getattr(p,'trans',False) and c.kind in ('vmem','ds','mfma') and pv & c.uses: n = max(n, 2 if c.kind=='mfma' else 1)
        if c.kind in ('salu','branch') and ps & c.uses: n = max(n, 1)
    if p.kind == 'mfma':
        big = {8: 12, 4: 8}[p.passes]; ov = {8: 10, 4: 6}[p.passes]; war = {8: 7, 4: 3}[p.passes]
        D = p.defs
        if c.kind == 'valu' and D & (c.uses | c.defs): n = max(n, big)
        if c.kind in ('vmem','ds') and D & (c.uses | c.defs): n = max(n, big)
        if c.kind == 'mfma':
            if D & c.srcAB: n = max(n, big)
            if D & c.srcC and not (c.srcC == D and c.passes == p.passes): n = max(n, ov)
            if D & c.defs and not (c.srcC == D): n = max(n, ov)
        if c.kind == 'valu' and (p.srcC & c.defs): n = max(n, war)
    if p.kind == 'salu' and ('m0',0) in p.defs and c.kind == 'vmem' and getattr(c,'dma',False): n = max(n, 1)
    if p.kind == 'vmem' and p.data and len(p.data) >= 3:
        if c.kind == 'valu' and p.data & c.defs: n = max(n, 2)
        elif c.kind in ('vmem','ds','mfma') and p.data & c.defs: n = max(n, 1)
    return n

MAXD = 13

class Asm:
    def __init__(self):
        self.lines = []
    def __call__(self, text):
        for l in text.strip('\n').split('\n'):
            self.lines.append(l)
    def label(self, name): self.lines.append(name + ':')
    def finalize(self, verbose=False):
        total_pad = 0
        for it in range(50):
            ins = [Ins(l) for l in self.lines]
            lab = {x.label: i for i, x in enumerate(ins) if x.label}
            preds = [[] for _ in ins]
            for i, x in enumerate(ins):
                if x.kind == 'branch':
                    if x.target in lab: preds[lab[x.target]].append(i)
                    if x.op != 's_branch' and i+1 < len(ins): preds[i+1].append(i)
                elif x.kind == 'end': pass
                elif i+1 < len(ins): preds[i+1].append(i)
            fix = None
            for i, c in enumerate(ins):
                if c.kind in ('dir','label','nop','misc','end'): continue
                stack = [(p, 0) for p in preds[i]]
                seen = {}
                worst = 0
                while stack:
                    j, d = stack.pop()
                    if d >= MAXD: continue
                    if seen.get(j, 99) <= d: continue
                    seen[j] = d
                    p = ins[j]
                    if p.kind not in ('dir','label'):
                        r = need(p, c)
                        if r > d: worst = max(worst, r - d)
                    for q in preds[j]: stack.append((q, d + p.ws))
                if worst:
                    fix = (i, worst); break
            if not fix: break
            i, w = fix
            if verbose: print(f"pad {w} before line {i}: {self.lines[i].strip()}")
            total_pad += w
            pads = []
            while w > 0:
                k = min(w, 16); pads.append(f"  s_nop {k-1}"); w -= k
            self.lines[i:i] = pads
        else:
            pass
        return "\n".join(self.lines) + "\n"

    def finalize_fast(self, verbose=False):
        npad = 0
        for it in range(20):
            ins = [Ins(l) for l in self.lines]
            lab = {x.label: i for i, x in enumerate(ins) if x.label}
            preds = [[] for _ in ins]
            for i, x in enumerate(ins):
                if x.kind == 'branch':
                    if x.target in lab: preds[lab[x.target]].append(i)
                    if x.op != 's_branch' and i+1 < len(ins): preds[i+1].append(i)
                elif x.kind == 'end': pass
                elif i+1 < len(ins): preds[i+1].append(i)
            fixes = []
            i = 0
            extra = [0]*len(ins)
            for i, c in enumerate(ins):
                if c.kind in ('dir','label','nop','misc','end'): continue
                stack = [(p, 0) for p in preds[i]]
                seen = {}
                worst = 0
                while stack:
                    j, d = stack.pop()
                    if d >= MAXD: continue
                    if seen.get(j, 99) <= d: continue
                    seen[j] = d
                    p = ins[j]
                    if p.kind not in ('dir','label'):
                        r = need(p, c)
                        if r > d: worst = max(worst, r - d)
                    for q in preds[j]: stack.append((q, d + p.ws + extra[j]))
                if worst:
                    extra[i] = worst
                    fixes.append((i, worst))
            if not fixes: break
            for i, w in reversed(fixes):
                if verbose: print(f"pad {w} before: {self.lines[i].strip()}")
                npad += 1
                pads = []
                while w > 0:
                    k = min(w, 16); pads.append(f"  s_nop {k-1}"); w -= k
                self.lines[i:i] = pads
        self.npad = npad
        return "\n".join(self.lines) + "\n"
```

```python
import sys, math, struct
from asmdsl import Asm

NAME = "gated_mix__softmax_full_mha__dense_activation_silu__prompt"
STAMP = "--stamp" in sys.argv
OUT = [a for a in sys.argv[1:] if not a.startswith("--")]
OUT = OUT[0] if OUT else f"cdna_kernels/{NAME}.s"

def f2u(x): return struct.unpack("<I", struct.pack("<f", x))[0]

WS_E = 0
FLAG1 = 4096
FLAGH = 20480
FLAGO = 36864
GATE = 65536
QF = 0x100000
KVF = 0x300000
AF = 0x800000
TSB = 0x1200000
WS_SIZE = 0x1300000
LX = 0
LWQ = 114688
LEARLY = 151552
LMISC = 159744
C_FFN1, C_RA, C_RB, C_RC, C_O = LMISC, LMISC+4, LMISC+8, LMISC+12, LMISC+16
LM = LMISC + 1024
LRED = 0
LWOS = 0
LOP = 65536
LDS_SIZE = 163840
SPIN = 100000

sW, sXCD, sIDX, sR1, sJ, sTAG, sE, sQ7, sR7 = "s3","s4","s5","s6","s7","s8","s9","s10","s11"
X_, WQKV_, WO_, W1_, W2_, GW_, OUT_, WS_, DBG_ = ("s[16:19]","s[20:23]","s[24:27]","s[28:31]","s[32:35]","s[36:39]","s[40:43]","s[44:47]","s[48:51]")
HI = "s[52:53]"; LO = "s[54:55]"; VM = "s[56:57]"
KV_ = "s[60:63]"
vLANE, vT, vH, vL16 = "v1","v2","v3","v4"

a = Asm()
def vr(b, n=1): return f"v{b}" if n == 1 else f"v[{b}:{b+n-1}]"
_uid = [0]
def uid(p):
    _uid[0] += 1
    return f"L_{p}_{_uid[0]}"

STV = ["v248"]
def stamp(i):
    if not STAMP: return
    a(f"""
  s_memrealtime s[74:75]
  s_waitcnt lgkmcnt(0)
  v_writelane_b32 {STV[0]}, s74, {i}
""")
def stamp_flush():
    if not STAMP: return
    a(f"""
  s_lshl_b32 s74, s2, 3
  s_add_u32 s74, s74, {sW}
  s_lshl_b32 s74, s74, 6
  s_add_u32 s74, s74, {TSB}
  v_lshlrev_b32 v5, 2, {vLANE}
  s_mov_b64 exec, 0xffff
  buffer_store_dword {STV[0]}, v5, {WS_}, s74 offen
  s_mov_b64 exec, -1
""")

def mfma(d, A, B, c=None):
    c = vr(d,16) if c is None else c
    a(f"  v_mfma_f32_32x32x16_bf16 {vr(d,16)}, {vr(A,4)}, {vr(B,4)}, {c}")

def poll_ws(vaddrs, vtmp, st="s12"):
    L = uid("poll"); D = uid("polld")
    a(f"  s_mov_b32 {st}, {SPIN}")
    a.label(L)
    for i, va in enumerate(vaddrs):
        a(f"  buffer_load_dword v{vtmp+i}, {va}, {WS_}, 0 offen sc1")
    a("  s_waitcnt vmcnt(0)")
    for i in range(1, len(vaddrs)):
        a(f"  v_xor_b32 v{vtmp+i}, v{vtmp+i}, v{vtmp}")
    a(f"  v_xor_b32 v{vtmp}, {sTAG}, v{vtmp}")
    for i in range(1, len(vaddrs)):
        a(f"  v_or_b32 v{vtmp}, v{vtmp}, v{vtmp+i}")
    a(f"  v_cmp_ne_u32 vcc, 0, v{vtmp}")
    a(f"  s_cbranch_vccz {D}")
    a(f"  s_sleep 1")
    a(f"  s_sub_u32 {st}, {st}, 1")
    a(f"  s_cmp_lg_u32 {st}, 0")
    a(f"  s_cbranch_scc1 {L}")
    a.label(D)

def lds_inc(addr, vt):
    a(f"""
  v_mov_b32 v{vt}, {addr}
  v_mov_b32 v{vt+1}, 1
  s_mov_b64 exec, 1
  ds_add_u32 v{vt}, v{vt+1}
  s_mov_b64 exec, -1
""")

def lds_wait(addr, val, vt, st="s12", st2="s13"):
    L = uid("lw"); D = uid("lwd")
    a(f"  v_mov_b32 v{vt}, {addr}")
    a(f"  s_mov_b32 {st}, {SPIN*10}")
    a.label(L)
    a(f"""
  ds_read_b32 v{vt+1}, v{vt}
  s_waitcnt lgkmcnt(0)
  v_readfirstlane_b32 {st2}, v{vt+1}
  s_cmp_ge_u32 {st2}, {val}
  s_cbranch_scc1 {D}
  s_sleep 1
  s_sub_u32 {st}, {st}, 1
  s_cmp_lg_u32 {st}, 0
  s_cbranch_scc1 {L}
""")
    a.label(D)

def flag_store(soff, vt):
    a(f"""
  v_mov_b32 v{vt}, {soff}
  v_mov_b32 v{vt+1}, {sTAG}
  s_mov_b64 exec, 1
  buffer_store_dword v{vt+1}, v{vt}, {WS_}, 0 offen sc1
  s_mov_b64 exec, -1
""")

def load_gate(stb, vaddr, vd):
    L = uid("gl"); D = uid("gld")
    a(f"""
  s_lshl_b32 s12, {stb}, 8
  s_add_u32 s12, s12, {GATE}
  v_lshl_add_u32 v{vaddr}, {vT}, 3, s12
  s_mov_b32 s13, {SPIN}
""")
    a.label(L)
    a(f"""
  buffer_load_dwordx2 v[{vd}:{vd+1}], v{vaddr}, {WS_}, 0 offen sc1
  s_waitcnt vmcnt(0)
  v_cmp_ne_u32 vcc, {sTAG}, v{vd+1}
  s_cbranch_vccz {D}
  s_sleep 1
  s_sub_u32 s13, s13, 1
  s_cmp_lg_u32 s13, 0
  s_cbranch_scc1 {L}
""")
    a.label(D)

def prologue():
    a(f"""
  s_cmp_ge_u32 s2, 256
  s_cbranch_scc1 L_end
  s_load_dwordx16 s[64:79], s[0:1], 0
  s_load_dwordx4 s[80:83], s[0:1], 64
  v_lshrrev_b32 v5, 6, v0
  v_and_b32 {vLANE}, 63, v0
  v_readfirstlane_b32 {sW}, v5
  v_and_b32 {vT}, 31, v0
  v_bfe_u32 {vH}, v0, 5, 1
  v_lshlrev_b32 {vL16}, 4, {vLANE}
  s_and_b32 {sXCD}, s2, 7
  s_lshr_b32 {sIDX}, s2, 3
  s_mul_i32 {sQ7}, {sIDX}, 37
  s_lshr_b32 {sQ7}, {sQ7}, 8
  s_mul_i32 s12, {sQ7}, 7
  s_sub_u32 {sR7}, {sIDX}, s12
  s_lshr_b32 s12, {sXCD}, 1
  s_lshl_b32 s12, s12, 2
  s_add_u32 {sR1}, s12, {sQ7}
  s_and_b32 s12, {sXCD}, 1
  s_mul_i32 s12, s12, 7
  s_add_u32 {sJ}, s12, {sR7}
  s_mov_b32 s52, 0
  s_mov_b32 s53, -1
  s_mov_b32 s54, -1
  s_mov_b32 s55, 0
  s_mov_b32 s56, 0x0fffffff
  s_mov_b32 s57, 0x0fffffff
  v_mov_b32 v5, 0
  s_waitcnt lgkmcnt(0)
""")
    srds = [(16, 64, 1835008), (20, 66, 1204224), (24, 68, 401408), (28, 72, 1605632), (32, 74, 1605632),
            (36, 76, 896), (40, 78, 1835008), (44, 82, WS_SIZE), (48, 80, 256)]
    for d, p, n in [srds[7]] + srds[:7] + [srds[8]]:
        a(f"""
  s_mov_b32 s{d}, s{p}
  s_and_b32 s{d+1}, s{p+1}, 0xffff
  s_mov_b32 s{d+2}, {n}
  s_mov_b32 s{d+3}, 0x00020000
""")
        if d == 44:
            a(f"  buffer_load_dword v6, v5, {WS_}, 0 offen sc1")
    a(f"""
  s_cmp_lg_u32 {sW}, 0
  s_cbranch_scc1 L_noinit
  v_lshlrev_b32 v7, 2, {vLANE}
  v_add_u32 v7, {LMISC}, v7
  ds_write_b32 v7, v5
L_noinit:
""")
    if STAMP:
        a("  v_mov_b32 v248, 0")
        a("  v_mov_b32 v60, 0")
        STV[0] = "v60"; stamp(0); a("  v_mov_b32 v248, v60"); STV[0] = "v248"
    a(f"""
  s_cmp_ge_u32 {sIDX}, 28
  s_cbranch_scc1 L_gate
""")

def get_tag():
    a(f"""
  v_readfirstlane_b32 {sE}, v6
  s_mul_i32 {sTAG}, {sE}, 0x9E3779B1
  s_xor_b32 {sTAG}, {sTAG}, 0x5bd1e995
""")

def arrive_epoch():
    D = uid("ep")
    a(f"""
  v_mov_b32 v8, 0
  v_mov_b32 v9, 1
  s_mov_b64 exec, 1
  buffer_atomic_add v9, v8, {DBG_}, 0 offen sc0
  s_waitcnt vmcnt(0)
  s_mov_b64 exec, -1
  v_readfirstlane_b32 s12, v9
  s_cmp_lg_u32 s12, 255
  s_cbranch_scc1 {D}
  s_add_u32 s12, {sE}, 1
  v_mov_b32 v9, s12
  s_mov_b64 exec, 1
  buffer_store_dword v9, v8, {WS_}, 0 offen sc1
  s_mov_b64 exec, -1
""")
    a.label(D)

def x_dma_addrs():
    for e in range(2):
        a(f"""
  v_lshrrev_b32 v12, 3, {vLANE}
  s_lshl_b32 s12, {sR1}, 7
  s_lshl_b32 s13, {sW}, 4
  s_add_u32 s12, s12, s13
  s_add_u32 s12, s12, {8*e}
  v_add_u32 v12, s12, v12
  v_mul_u32_u24 v12, 896, v12
  v_lshrrev_b32 v13, 4, {vLANE}
  v_add_u32 v13, {4*e}, v13
  v_and_b32 v14, 7, {vLANE}
  v_xor_b32 v13, v13, v14
  v_lshl_add_u32 v{10+e}, v13, 4, v12
""")
    a(f"  s_lshl_b32 s58, {sW}, 11")

def x_dma(kb):
    for e in range(2):
        a(f"""
  s_add_u32 m0, s58, {LX + kb*16256 + e*1024}
  buffer_load_dwordx4 v{10+e}, {X_}, 0 offen offset:{128*kb} lds
""")

def phaseQ_A():
    x_dma_addrs()
    for kb in range(7): x_dma(kb)
    a("  s_setprio 2")
    a(f"""
  s_and_b32 s12, {sXCD}, 1
  s_mul_i32 s64, s12, {KVF-QF}
  s_add_u32 s64, s64, {QF}
  s_lshl_b32 s65, 131072, s12
  s_lshl_b32 s66, 2048, s12
  s_cmp_eq_u32 s12, 0
  s_cselect_b32 s101, {f2u(math.log2(math.e)/math.sqrt(28.0))}, 1.0
  s_sub_u32 s100, s65, 1536
  s_lshl_b32 s67, {sR1}, 2
  s_add_u32 s67, s67, {sW}
  s_mul_i32 s12, s67, s66
  s_add_u32 s64, s64, s12
""")
    for n in range(8):
        a(f"""
  s_lshl_b32 s12, {sR7}, 3
  s_add_u32 s12, s12, {n}
  s_mul_i32 s13, s12, 37
  s_lshr_b32 s13, s13, 8
  s_mul_i32 s14, s13, 7
  s_sub_u32 s14, s12, s14
  s_lshl_b32 s13, s13, 1
  s_cmp_eq_u32 s14, 3
  s_cselect_b32 s{92+n}, -1, 0
  s_cmp_gt_u32 s14, 3
  s_cselect_b32 s15, 1, 0
  s_add_u32 s13, s13, s15
  s_mul_i32 s15, s15, 3
  s_sub_u32 s14, s14, s15
  s_mul_i32 s13, s13, s65
  s_lshl_b32 s14, s14, 9
  s_add_u32 s13, s13, s14
  s_add_u32 s{84+n}, s13, s64
""")
    a(f"""
  v_bfe_u32 v12, {vT}, 1, 3
  s_lshl_b32 s12, {sW}, 12
  v_lshl_add_u32 v13, {vT}, 7, s12
""")
    for k in range(4):
        a(f"""
  v_add_u32 v14, {2*k}, {vH}
  v_xor_b32 v14, v14, v12
  v_lshl_add_u32 v{16+k}, v14, 4, v13
""")
    a(f"""
  v_bfe_u32 v12, {vLANE}, 2, 2
  v_lshl_add_u32 v12, {vH}, 3, v12
  v_mul_u32_u24 v12, 192, v12
  v_bfe_u32 v13, {vLANE}, 4, 1
  v_lshl_add_u32 v12, v13, 5, v12
  v_and_b32 v13, 3, {vLANE}
  v_lshl_add_u32 v12, v13, 3, v12
  v_add_u32 v20, {LWQ}, v12
""")
    a(f"""
  s_lshl_b32 s12, {sJ}, 5
  v_add_u32 v12, s12, {vT}
  v_mul_u32_u24 v13, 2341, v12
  v_lshrrev_b32 v13, 16, v13
  v_mul_u32_u24 v14, 28, v13
  v_sub_u32 v12, v12, v14
  v_lshl_add_u32 v12, {vH}, 5, v12
  v_lshlrev_b32 v12, 4, v12
  v_lshl_add_u32 v12, v13, 18, v12
  s_lshl_b32 s12, s67, 12
  s_add_u32 s12, s12, {KVF}
  v_add_u32 v21, s12, v12
  v_lshlrev_b32 v22, 4, {vT}
""")
    ACC = [64, 80, 96]
    def reads(kb, k):
        b = 112 + 16*k
        slot = kb % 3
        a(f"  ds_read_b128 {vr(b,4)}, v{16+k} offset:{(kb&3)*16384}")
        for ct in range(3):
            for hf in range(2):
                a(f"  ds_read_b64_tr_b16 {vr(b+4+4*ct+2*hf,2)}, v20 offset:{slot*12288 + k*3072 + hf*768 + ct*64}")
    def mm(kb, k):
        b = 112 + 16*k
        c0 = "0" if (kb == 0 and k == 0) else None
        mfma(ACC[0], b+4, b, c0)
        mfma(ACC[1], b+8, b, c0)
        mfma(ACC[2], b, b+12, c0)
    for kb in range(7):
        a(f"  s_waitcnt vmcnt({2*(6-kb)})")
        if kb == 0:
            get_tag()
            a("  s_waitcnt lgkmcnt(0)")
        a("  s_barrier")
        if kb == 0: stamp(1)
        if kb == 4:
            for k in range(4): a(f"  v_add_u32 v{16+k}, 0x10000, v{16+k}")
        reads(kb, 0); reads(kb, 1)
        a("  s_waitcnt lgkmcnt(7)"); mm(kb, 0)
        reads(kb, 2)
        a("  s_waitcnt lgkmcnt(7)"); mm(kb, 1)
        reads(kb, 3)
        a("  s_waitcnt lgkmcnt(7)"); mm(kb, 2)
        a("  s_waitcnt lgkmcnt(0)"); mm(kb, 3)
    a("  s_barrier")
    stamp(2)
    ONES = 0x3F803F80
    a(f"""
  v_mov_b32 v112, {ONES}
  v_mov_b32 v113, {ONES}
  v_mov_b32 v116, {ONES}
  v_mov_b32 v117, {ONES}
""")
    for tile in range(2):
        acc = ACC[tile]
        P = 120 + 8*tile
        for i in range(16):
            a(f"  v_mul_f32 v{acc+i}, s101, v{acc+i}")
        for i in range(8):
            a(f"  v_cvt_pk_bf16_f32 v{P+i}, v{acc+2*i}, v{acc+2*i+1}")
        for half in range(2):
            q = P + 4*half
            k = 2*tile + half
            T = 112 + 4*(k & 1)
            va = 24 + k
            a(f"""
  v_permlane32_swap_b32 v{q}, v{q+2}
  v_permlane32_swap_b32 v{q+1}, v{q+3}
  v_mov_b32 v{va}, s{84+2*k}
  s_mov_b64 exec, {HI}
  v_mov_b32 v{va}, s{85+2*k}
  s_mov_b64 exec, -1
  v_add_u32 v{va}, v{va}, v22
  v_mov_b32 v{T+2}, v{q+2}
  v_mov_b32 v{T+3}, v{q+3}
  s_mov_b64 exec, s[{92+2*k}:{93+2*k}]
  s_cbranch_execz L_nosplit{k}
  buffer_store_dwordx4 {vr(T,4)}, v{va}, {WS_}, s100 offen sc1
  v_mov_b32 v{q+2}, {ONES}
  v_mov_b32 v{q+3}, {ONES}
L_nosplit{k}:
  s_mov_b64 exec, -1
  buffer_store_dwordx4 {vr(q,4)}, v{va}, {WS_}, 0 offen sc1
""")
    acc = ACC[2]; P = 136
    for i in range(8):
        a(f"  v_cvt_pk_bf16_f32 v{P+i}, v{acc+2*i}, v{acc+2*i+1}")
    a(f"""
  buffer_store_dwordx4 {vr(P,4)}, v21, {WS_}, 0 offen offset:2048 sc1
  buffer_store_dwordx4 {vr(P+4,4)}, v21, {WS_}, 0 offen offset:3072 sc1
  s_lshl_b32 s12, {sJ}, 6
  s_add_u32 s12, s12, s67
  s_lshl_b32 s12, s12, 4
  s_add_u32 s14, s12, {FLAG1}
  s_waitcnt vmcnt(0)
""")
    flag_store("s14", 12)
    stamp(3)

def attention():
    Q, O, S, P, K, V = 8, 40, 104, 136, 152, 184
    MX = 216; vKVA = 220; vG = 222; vTMP = 224
    sHEAD, sRA, sTB, sRETRY, sKO, sVO, sIT = "s64","s65","s66","s67","s68","s69","s70"
    a.label("L_attn")
    a(f"""
  s_setprio 2
  s_and_b32 s12, {sIDX}, 1
  s_lshl_b32 {sHEAD}, {sXCD}, 1
  s_add_u32 {sHEAD}, {sHEAD}, s12
  s_lshr_b32 {sRA}, {sIDX}, 1
  s_lshl_b32 {sTB}, {sRA}, 2
  s_add_u32 {sTB}, {sTB}, {sW}
  s_mov_b32 {sRETRY}, 0
  s_lshl_b32 s12, {sHEAD}, 2
  s_add_u32 s12, s12, {sW}
  s_lshl_b32 s12, s12, 16
  s_add_u32 s12, s12, {KVF}
  s_add_u32 s60, s44, s12
  s_addc_u32 s61, s45, 0
  s_mov_b32 s62, 65536
  s_mov_b32 s63, 0x00020000
""")
    a(f"""
  s_mul_i32 s12, {sHEAD}, 28
  v_lshrrev_b32 v226, 4, {vLANE}
  v_and_b32 v227, 1, v226
  v_mul_u32_u24 v227, 27, v227
  v_add_u32 v227, s12, v227
  v_lshrrev_b32 v226, 1, v226
  v_sub_u32 v228, 6, v226
  v_lshrrev_b32 v227, v228, v227
  v_sub_u32 v226, 1, v226
  v_mul_u32_u24 v226, 7, v226
  v_add_u32 v227, v227, v226
  v_lshlrev_b32 v227, 6, v227
  v_and_b32 v226, 15, {vLANE}
  v_add_u32 v227, v227, v226
  s_lshl_b32 s13, {sW}, 4
  v_add_u32 v227, s13, v227
  v_lshlrev_b32 v227, 4, v227
  v_add_u32 v224, {FLAG1}, v227
  v_bfe_u32 v226, {vLANE}, 2, 1
  v_mul_u32_u24 v226, 27, v226
  v_add_u32 v226, s12, v226
  v_lshrrev_b32 v226, 6, v226
  v_lshlrev_b32 v226, 6, v226
  v_and_b32 v227, 3, {vLANE}
  v_add_u32 v226, v226, v227
  s_lshl_b32 s13, {sRA}, 2
  v_add_u32 v226, s13, v226
  v_lshlrev_b32 v226, 4, v226
  v_add_u32 v225, {FLAG1}, v226
  s_lshl_b32 s12, {sHEAD}, 6
  s_add_u32 s12, s12, s13
  s_lshl_b32 s12, s12, 11
  s_add_u32 s12, s12, {QF}
  v_add_u32 v{vKVA+1}, s12, {vL16}
""")
    a(f"  v_cmp_eq_u32 vcc, 28, {vT}")
    a(f"  v_mov_b32 v226, 0x3F803F80")
    a(f"  v_cndmask_b32 v226, 0, v226, vcc")
    for i in range(32): a(f"  v_mov_b32 v{V+i}, v226")
    for i in range(64): a(f"  v_mov_b32 v{O+i}, 0")
    poll_ws(["v224", "v225"], 226)
    stamp(4)
    for qb in range(4):
        for s in range(2):
            off = (qb*2048 + s*1024)
            so = "0"
            if off >= 4096:
                so = "s13"; off -= 4096
                if qb == 2 and s == 0: a("  s_mov_b32 s13, 4096")
            a(f"  buffer_load_dwordx4 {vr(Q+8*qb+4*s,4)}, v{vKVA+1}, {WS_}, {so} offen offset:{off} sc1")
    def ldK(setn, soff):
        for s in range(2):
            a(f"  buffer_load_dwordx4 {vr(K+8*setn+4*s,4)}, {vL16}, {KV_}, {soff} offen offset:{1024*s} sc1")
    def ldV(setn, soff):
        a(f"  s_mov_b64 exec, {VM}")
        for s in range(2):
            a(f"  buffer_load_dwordx4 {vr(V+8*setn+4*s,4)}, {vL16}, {KV_}, {soff} offen offset:{2048+1024*s} sc1")
        a(f"  s_mov_b64 exec, -1")
    def stream_prologue():
        a("  s_mov_b32 s12, 0")
        ldK(0, "s12"); ldV(0, "s12")
        a("  s_mov_b32 s12, 4096")
        ldK(1, "s12"); ldV(1, "s12")
        a("  s_mov_b32 s12, 8192")
        ldK(2, "s12"); ldV(2, "s12")
        a("  s_mov_b32 s12, 12288")
        ldK(3, "s12")
        a(f"  s_mov_b32 {sVO}, 12288")
        a(f"  s_mov_b32 {sKO}, 16384")
    def set_pads(fa):
        Lo = uid("odd"); Le = uid("pe")
        a(f"  s_bitcmp1_b32 {sHEAD}, 0")
        a(f"  s_cbranch_scc1 {Lo}")
        a(f"  s_mov_b64 exec, {HI}")
        for qb in range(4):
            A_, B_ = fa(qb)
            a(f"  v_mov_b32 v{Q+8*qb+6}, {A_}")
            a(f"  v_mov_b32 v{Q+8*qb+7}, {B_}")
        a(f"  s_branch {Le}")
        a.label(Lo)
        a(f"  s_mov_b64 exec, {LO}")
        for qb in range(4):
            A_, B_ = fa(qb)
            a(f"  v_mov_b32 v{Q+8*qb+0}, {A_}")
            a(f"  v_mov_b32 v{Q+8*qb+1}, {B_}")
        a.label(Le)
        a(f"  s_mov_b64 exec, -1")
    def max_body():
        for pr in range(2):
            for u in range(2):
                qb = 2*pr + u
                mfma(S+16*u, K, Q+8*qb, "0")
                mfma(S+16*u, K+4, Q+8*qb+4)
            for u in range(2):
                qb = 2*pr + u
                for i in range(8):
                    a(f"  v_max3_f32 v{MX+qb}, v{MX+qb}, v{S+16*u+2*i}, v{S+16*u+2*i+1}")
    stream_prologue()
    for qb in range(4): a(f"  v_mov_b32 v{MX+qb}, 0xff800000")
    a("  s_waitcnt vmcnt(12)")
    set_pads(lambda qb: ("0", "0"))
    max_body()
    a.label("L_maxdone")
    for qb in range(4):
        t = vTMP + 4*qb
        a(f"""
  v_mov_b32 v{t}, v{MX+qb}
  v_mov_b32 v{t+1}, v{MX+qb}
""")
    for qb in range(4):
        t = vTMP + 4*qb
        a(f"  v_permlane32_swap_b32 v{t}, v{t+1}")
    for qb in range(4):
        t = vTMP + 4*qb
        a(f"""
  v_max_f32 v{MX+qb}, v{t}, v{t+1}
  v_add_f32 v{MX+qb}, 0x41f00000, v{MX+qb}
  v_sub_f32 v{t}, 0, v{MX+qb}
  v_cvt_pk_bf16_f32 v{t+1}, v{t}, v{t}
  v_lshlrev_b32 v{t+1}, 16, v{t+1}
  v_sub_f32 v{t+1}, v{t}, v{t+1}
  v_cvt_pk_bf16_f32 v{t+2}, v{t}, v{t+1}
  v_and_b32 v{t+3}, 0xffff0000, v{t+2}
  v_sub_f32 v{t+1}, v{t+1}, v{t+3}
  v_cvt_pk_bf16_f32 v{t+3}, v{t+1}, 0
""")
    set_pads(lambda qb: (f"v{vTMP+4*qb+2}", f"v{vTMP+4*qb+3}"))
    for i in range(12, 16): a(f"  v_mov_b32 v{S+16+i}, 0")
    a(f"  v_mov_b32 v{P+8+4}, 0")
    a(f"  v_mov_b32 v{P+8+5}, 0")
    mfma(S, K, Q, "0")
    mfma(S, K+4, Q+4)
    a(f"  s_mov_b32 {sIT}, 4")
    a("  s_nop 7")
    a("  s_nop 3")
    stamp(5)
    a(".p2align 6")
    a.label("L_main")
    for nn in range(4):
        for qb in range(4):
            tau = 4*nn + qb
            sb = S + 16*(tau & 1); so = S + 16*((tau+1) & 1)
            pb = P + 8*(tau & 1); po = P + 8*((tau+1) & 1)
            e = lambda i: a(f"  v_exp_f32 v{sb+i}, v{sb+i}")
            c = lambda i: a(f"  v_cvt_pk_bf16_f32 v{pb+i}, v{sb+2*i}, v{sb+2*i+1}")
            cp = lambda i: a(f"  v_cvt_pk_bf16_f32 v{po+i}, v{so+2*i}, v{so+2*i+1}")
            nq = (qb+1) & 3; nn1 = (nn + (1 if qb == 3 else 0)) & 3
            pq = (qb-1) & 3; pn = (nn - (1 if qb == 0 else 0)) & 3
            e(0); cp(6); e(1); cp(7); e(2); e(3)
            if qb == 3: a("  s_waitcnt vmcnt(10)")
            mfma(so, K+8*nn1, Q+8*nq, "0")
            e(4); c(0); e(5); c(1); e(6); e(7)
            mfma(so, K+8*nn1+4, Q+8*nq+4)
            if qb == 3:
                ldK(nn, sKO)
                a(f"  s_add_u32 {sKO}, {sKO}, 4096")
            e(8); c(2); e(9); c(3); e(10); e(11)
            mfma(O+16*pq, V+8*pn+4, po+4)
            if qb == 1:
                pass
            e(12); c(4); e(13); c(5); e(14); e(15)
            if qb == 0: a("  s_waitcnt vmcnt(10)")
            mfma(O+16*qb, V+8*nn, pb)
            if qb == 1:
                ldV((nn+3) & 3, sVO)
                a(f"  s_add_u32 {sVO}, {sVO}, 4096")
    a(f"""
  s_sub_u32 {sIT}, {sIT}, 1
  s_cmp_lg_u32 {sIT}, 0
  s_cbranch_scc1 L_main
""")
    a(f"  v_cvt_pk_bf16_f32 v{P+8+6}, v{S+16+12}, v{S+16+13}")
    a(f"  v_cvt_pk_bf16_f32 v{P+8+7}, v{S+16+14}, v{S+16+15}")
    mfma(O+48, V+24+4, P+8+4)
    stamp(6)
    a(f"""
  s_mov_b32 s12, {f2u(2.0**50)}
  v_max3_f32 v{vTMP}, v{O+12}, v{O+16+12}, v{O+32+12}
  v_add_f32 v{vTMP+1}, v{O+12}, v{O+16+12}
  v_add_f32 v{vTMP+2}, v{O+32+12}, v{O+48+12}
  v_add_f32 v{vTMP+1}, v{vTMP+1}, v{vTMP+2}
  v_cmp_nle_f32 vcc, v{vTMP+1}, s12
""".replace(f"  v_max3_f32 v{vTMP}, v{O+12}, v{O+16+12}, v{O+32+12}\n", ""))
    a(f"""
  s_and_b64 s[14:15], vcc, {HI}
  s_cbranch_scc0 L_attn_ok
  s_cmp_lg_u32 {sRETRY}, 0
  s_cbranch_scc1 L_attn_ok
  s_mov_b32 {sRETRY}, 1
  s_waitcnt vmcnt(0)
""")
    for qb in range(4): a(f"  v_mov_b32 v{MX+qb}, 0xff800000")
    for i in range(64): a(f"  v_mov_b32 v{O+i}, 0")
    set_pads(lambda qb: ("0", "0"))
    a("  s_mov_b32 s71, 0")
    a.label("L_maxloop")
    ldK(0, "s71")
    a("  s_waitcnt vmcnt(0)")
    max_body()
    a(f"""
  s_add_u32 s71, s71, 4096
  s_cmp_lt_u32 s71, 65536
  s_cbranch_scc1 L_maxloop
""")
    stream_prologue()
    a("  s_waitcnt vmcnt(12)")
    a("  s_branch L_maxdone")
    a.label("L_attn_ok")
    a("  s_waitcnt vmcnt(0)")
    load_gate(sTB, 226, vG)
    lds_wait(C_FFN1, 4, 226)
    a(f"""
  s_lshl_b32 s12, {sW}, 7
  s_add_u32 s12, s12, {LM}
  v_lshl_add_u32 v226, {vT}, 2, s12
""")
    for qb in range(4):
        a(f"  ds_write_b32 v226, v{MX+qb} offset:{qb*512}")
    for qb in range(4):
        Sk = uid("skipw")
        a(f"""
  s_cmp_eq_u32 {sW}, {qb}
  s_cbranch_scc1 {Sk}
  s_sub_u32 s12, {sW}, {qb+1}
  s_and_b32 s12, s12, 3
  s_lshl_b32 s12, s12, 12
  s_add_u32 s12, s12, {LOP + qb*12288}
  v_add_u32 v227, s12, {vL16}
""")
        for qd in range(4):
            a(f"  ds_write_b128 v227, {vr(O+16*qb+4*qd,4)} offset:{qd*1024}")
        a.label(Sk)
    for qb in range(4):
        Sk = uid("own")
        a(f"  s_cmp_lg_u32 {sW}, {qb}")
        a(f"  s_cbranch_scc1 {Sk}")
        for i in range(16): a(f"  v_mov_b32 v{S+i}, v{O+16*qb+i}")
        a(f"  v_mov_b32 v{vTMP+8}, v{MX+qb}")
        a.label(Sk)
    a("  s_waitcnt lgkmcnt(0)")
    lds_inc(C_O, 226)
    lds_wait(C_O, 4, 226)
    a(f"""
  s_mul_i32 s12, {sW}, 12288
  s_add_u32 s12, s12, {LOP}
  v_add_u32 v227, s12, {vL16}
""")
    for sl in range(3):
        a(f"""
  s_add_u32 s13, {sW}, {sl+1}
  s_and_b32 s13, s13, 3
  s_lshl_b32 s13, s13, 7
  s_lshl_b32 s14, {sW}, 9
  s_add_u32 s13, s13, s14
  s_add_u32 s13, s13, {LM}
  v_lshl_add_u32 v226, {vT}, 2, s13
  ds_read_b32 v{vTMP+9+sl}, v226
""")
    for sl in range(3):
        for qd in range(4):
            a(f"  ds_read_b128 {vr(O+16*sl+4*qd,4)}, v227 offset:{sl*4096+qd*1024}")
    m = vTMP + 8
    a(f"""
  s_waitcnt lgkmcnt(12)
  v_max3_f32 v{vTMP}, v{m}, v{m+1}, v{m+2}
  v_max_f32 v{vTMP}, v{vTMP}, v{m+3}
""")
    for i in range(4): a(f"  v_sub_f32 v{m+i}, v{m+i}, v{vTMP}")
    for i in range(4): a(f"  v_exp_f32 v{m+i}, v{m+i}")
    for i in range(16): a(f"  v_mul_f32 v{S+i}, v{S+i}, v{m}")
    a("  s_waitcnt lgkmcnt(0)")
    for sl in range(3):
        for i in range(16): a(f"  v_fmac_f32 v{S+i}, v{O+16*sl+i}, v{m+1+sl}")
    a(f"""
  v_mov_b32 v{vTMP}, v{S+12}
  v_mov_b32 v{vTMP+1}, v{S+12}
  v_permlane32_swap_b32 v{vTMP}, v{vTMP+1}
  v_rcp_f32 v{vTMP+1}, v{vTMP+1}
  v_lshlrev_b32 v{vTMP+2}, 16, v{vG}
  v_mul_f32 v{vTMP+1}, v{vTMP+1}, v{vTMP+2}
""")
    for i in range(16): a(f"  v_mul_f32 v{S+i}, v{S+i}, v{vTMP+1}")
    for i in range(8): a(f"  v_cvt_pk_bf16_f32 v{P+i}, v{S+2*i}, v{S+2*i+1}")
    a(f"""
  s_mov_b64 exec, {HI}
  v_mov_b32 v{P+6}, 0
  v_mov_b32 v{P+7}, 0
  s_mov_b64 exec, -1
  s_mul_i32 s12, {sTB}, 144
  s_lshl_b32 s13, {sHEAD}, 1
  s_add_u32 s12, s12, s13
  s_add_u32 s12, s12, 112
  s_lshl_b32 s12, s12, 10
  s_add_u32 s12, s12, {AF}
  buffer_store_dwordx4 {vr(P,4)}, {vL16}, {WS_}, s12 offen sc1
  buffer_store_dwordx4 {vr(P+4,4)}, {vL16}, {WS_}, s12 offen offset:1024 sc1
  s_lshl_b32 s12, {sTB}, 4
  s_add_u32 s12, s12, {sHEAD}
  s_lshl_b32 s12, s12, 4
  s_add_u32 s14, s12, {FLAGO}
  s_waitcnt vmcnt(0)
""")
    flag_store("s14", 226)
    stamp(7)
    stamp_flush()
    a("  s_endpgm")

def fwave():
    STV[0] = "v60"
    sF, sCT, sWO = "s64", "s65", "s66"
    a.label("L_fwave")
    a(f"  s_sub_u32 {sF}, {sW}, 4")
    x_dma_addrs()
    for e in range(3):
        a(f"""
  s_mul_i32 s12, {sF}, 192
  s_add_u32 s12, s12, {64*e}
  v_add_u32 v12, s12, {vLANE}
  v_mul_u32_u24 v13, 43691, v12
  v_lshrrev_b32 v13, 19, v13
  v_mul_u32_u24 v14, 12, v13
  v_sub_u32 v12, v12, v14
  v_mul_u32_u24 v13, 2688, v13
  v_lshl_add_u32 v13, v12, 4, v13
  s_lshl_b32 s12, {sJ}, 7
  s_lshl_b32 s13, {sJ}, 6
  s_add_u32 s13, s13, {1792-128}
  v_mov_b32 v14, s12
  v_mov_b32 v15, s13
  v_cmp_gt_u32 vcc, 8, v12
  v_cndmask_b32 v14, v15, v14, vcc
  v_add_u32 v{24+e}, v13, v14
""")
    a(f"""
  s_mul_i32 s59, {sF}, 3072
  s_add_u32 s59, s59, {LWQ}
  s_lshl_b32 {sCT}, {sJ}, 2
  s_add_u32 {sCT}, {sCT}, {sF}
  v_lshrrev_b32 v12, 2, {vLANE}
  v_mul_u32_u24 v12, 3584, v12
  v_and_b32 v13, 3, {vLANE}
  v_lshl_add_u32 v12, v13, 4, v12
  s_lshl_b32 s12, {sCT}, 6
  v_add_u32 v27, s12, v12
  s_mov_b32 {sWO}, 0
  s_lshl_b32 s67, {sF}, 11
  s_add_u32 s67, s67, {LEARLY}
  s_mul_i32 s68, {sF}, 9216
  s_add_u32 s68, s68, {LWQ}
""")
    def w_dma(kb):
        a(f"  s_mov_b32 s12, {kb*172032}")
        for e in range(3):
            a(f"""
  s_add_u32 m0, s59, {(kb%3)*12288 + e*1024}
  buffer_load_dwordx4 v{24+e}, {WQKV_}, s12 offen lds
""")
    def w1_dma(ks):
        if ks < 2: a(f"  s_add_u32 m0, s67, {ks*1024}")
        else: a(f"  s_add_u32 m0, s68, {((ks-2)%9)*1024}")
        a(f"  buffer_load_dwordx4 v27, {W1_}, {sWO} offen lds")
        a(f"  s_add_u32 {sWO}, {sWO}, 57344")
    for kb in range(3):
        x_dma(kb); w_dma(kb)
    for kb in range(3, 7): x_dma(kb)
    w1_dma(0); w1_dma(1)
    a(f"""
  v_bfe_u32 v12, {vT}, 1, 3
  v_lshlrev_b32 v13, 7, {vT}
""")
    for k in range(4):
        a(f"""
  v_add_u32 v14, {2*k}, {vH}
  v_xor_b32 v14, v14, v12
  v_lshl_add_u32 v{16+k}, v14, 4, v13
  v_add_u32 v{28+k}, 0x10000, v{16+k}
""")
    a(f"""
  v_bfe_u32 v12, {vLANE}, 2, 2
  v_lshl_add_u32 v12, {vH}, 3, v12
  v_lshlrev_b32 v12, 6, v12
  v_bfe_u32 v13, {vLANE}, 4, 1
  v_lshl_add_u32 v12, v13, 5, v12
  v_and_b32 v13, 3, {vLANE}
  v_lshl_add_u32 v12, v13, 3, v12
  v_add_u32 v20, s67, v12
  v_add_u32 v21, s68, v12
""")
    waits = [20, 15, 13, 3, 3, 3, 0]
    for kb in range(7):
        a(f"  s_waitcnt vmcnt({waits[kb]})")
        if kb == 0:
            get_tag()
        a("  s_barrier")
        if 1 <= kb <= 4: w_dma(kb+2)
    a("  s_barrier")
    stamp(1)
    for ks in range(2, 11): w1_dma(ks)
    ACC = 64
    def reads(ks):
        b = 128 + 20*(ks & 1)
        kb, k = ks >> 2, ks & 3
        for tb in range(4):
            va = (16 if kb < 4 else 28) + k
            a(f"  ds_read_b128 {vr(b+4*tb,4)}, v{va} offset:{(kb&3)*16384 + tb*4096}")
        for hf in range(2):
            if ks < 2: a(f"  ds_read_b64_tr_b16 {vr(b+16+2*hf,2)}, v20 offset:{ks*1024 + hf*256}")
            else: a(f"  ds_read_b64_tr_b16 {vr(b+16+2*hf,2)}, v21 offset:{((ks-2)%9)*1024 + hf*256}")
    issued = 11
    reads(0)
    for ks in range(28):
        if ks+1 < 28:
            nxt = ks+1
            if nxt >= 2:
                a(f"  s_waitcnt vmcnt({issued-1-nxt})")
            reads(nxt)
            a("  s_waitcnt lgkmcnt(6)")
        else:
            a("  s_waitcnt lgkmcnt(0)")
        b = 128 + 20*(ks & 1)
        for tb in range(4):
            mfma(ACC+16*tb, b+16, b+4*tb, "0" if ks == 0 else None)
        if ks >= 2 and ks+9 < 28:
            w1_dma(ks+9); issued += 1
    stamp(2)
    sTB0 = "s69"; sW2O = "s70"; sAO = "s71"
    a(f"""
  s_lshl_b32 {sTB0}, {sXCD}, 2
  s_add_u32 {sTB0}, {sTB0}, {sQ7}
  s_lshl_b32 {sTB0}, {sTB0}, 1
  v_lshrrev_b32 v12, 3, {vLANE}
  v_mul_u32_u24 v12, 896, v12
  v_bfe_u32 v13, {vLANE}, 4, 1
  v_lshlrev_b32 v13, 2, v13
  v_and_b32 v14, 7, {vLANE}
  v_xor_b32 v13, v13, v14
  v_lshl_add_u32 v12, v13, 4, v12
  s_lshl_b32 s12, {sR7}, 7
  v_add_u32 v24, s12, v12
  v_add_u32 v25, 7168, v24
  s_mul_i32 {sW2O}, {sF}, {28*14336}
""")
    def w2_dma(n):
        for e in range(2):
            a(f"""
  s_add_u32 m0, s68, {(n%4)*2048 + e*1024}
  buffer_load_dwordx4 v{24+e}, {W2_}, {sW2O} offen lds
""")
        a(f"  s_add_u32 {sW2O}, {sW2O}, 14336")
    for n in range(3): w2_dma(n)
    a(f"  s_mov_b32 s12, {f2u(-math.log2(math.e))}")
    T = 128
    for tb in range(4):
        acc = ACC + 16*tb
        for g in range(2):
            r = range(8*g, 8*g+8)
            for i in r: a(f"  v_mul_f32 v{T+i}, s12, v{acc+i}")
            for i in r: a(f"  v_exp_f32 v{T+i}, v{T+i}")
            for i in r: a(f"  v_add_f32 v{T+i}, 1.0, v{T+i}")
            for i in r: a(f"  v_rcp_f32 v{T+i}, v{T+i}")
            for i in r: a(f"  v_mul_f32 v{T+i}, v{T+i}, v{acc+i}")
            Pq = 144 + 4*((2*tb+g) & 3)
            for i in range(4): a(f"  v_cvt_pk_bf16_f32 v{Pq+i}, v{T+8*g+2*i}, v{T+8*g+2*i+1}")
            if g == 0:
                a(f"""
  s_lshl_b32 s13, {sR1}, 2
  s_add_u32 s13, s13, {tb}
  s_mul_i32 s13, s13, 144
  s_lshl_b32 s14, {sCT}, 1
  s_add_u32 s13, s13, s14
  s_lshl_b32 s13, s13, 10
  s_add_u32 s13, s13, {AF}
""")
            a(f"  buffer_store_dwordx4 {vr(Pq,4)}, {vL16}, {WS_}, s13 offen offset:{1024*g} sc1")
    lds_inc(C_FFN1, 12)
    a(f"""
  s_lshl_b32 s12, {sR1}, 6
  s_add_u32 s12, s12, {sCT}
  s_lshl_b32 s12, s12, 4
  s_add_u32 s14, s12, {FLAGH}
  s_waitcnt vmcnt(0)
""")
    flag_store("s14", 12)
    stamp(3)
    Lna = uid("noarr")
    a(f"  s_cmp_lg_u32 {sW}, 7")
    a(f"  s_cbranch_scc1 {Lna}")
    arrive_epoch()
    a.label(Lna)
    a(f"""
  v_min_u32 v12, 13, {vLANE}
  s_mul_i32 s12, {sF}, 14
  s_lshr_b32 s13, {sTB0}, 2
  s_lshl_b32 s13, s13, 6
  s_add_u32 s12, s12, s13
  v_add_u32 v12, s12, v12
  v_lshlrev_b32 v12, 4, v12
  v_add_u32 v12, {FLAGH}, v12
  s_mul_i32 s12, {sTB0}, 147456
  s_mul_i32 s13, {sF}, {28*1024}
  s_add_u32 s12, s12, s13
  s_add_u32 s12, s12, {AF}
  v_add_u32 v26, s12, {vL16}
  v_add_u32 v27, 147456, v26
  s_mov_b32 {sAO}, 0
  v_bfe_u32 v13, {vLANE}, 2, 2
  v_lshl_add_u32 v14, {vH}, 2, v13
  v_lshlrev_b32 v14, 7, v14
  v_lshrrev_b32 v13, 1, v13
  v_lshl_add_u32 v14, v13, 6, v14
  v_bfe_u32 v13, {vLANE}, 4, 1
  v_lshl_add_u32 v14, v13, 5, v14
  v_and_b32 v13, 3, {vLANE}
  v_lshl_add_u32 v14, v13, 3, v14
  v_add_u32 v20, s68, v14
  v_xor_b32 v21, 64, v20
  v_mov_b32 v22, v14
  v_xor_b32 v23, 64, v22
""")
    load_gate(sTB0, 13, 32)
    a(f"  s_add_u32 s72, {sTB0}, 1")
    load_gate("s72", 13, 34)
    poll_ws(["v12"], 13)
    stamp(4)
    AB = 128
    WB = 160
    def a_ld(n):
        for tb in range(2):
            a(f"  buffer_load_dwordx4 {vr(AB+8*(n%4)+4*tb,4)}, v{26+tb}, {WS_}, {sAO} offen sc1")
        a(f"  s_add_u32 {sAO}, {sAO}, 1024")
    for n in range(3): a_ld(n)
    def wreads(n):
        b = WB + 8*(n & 1)
        for ct in range(2):
            for hf in range(2):
                a(f"  ds_read_b64_tr_b16 {vr(b+4*ct+2*hf,2)}, v{20+ct} offset:{(n%4)*2048 + hf*1024}")
    seq = [("a",0),("a",0),("a",1),("a",1),("a",2),("a",2)]
    def need_wait(items):
        last = max(i for i, x in enumerate(seq) if x in items) if any(x in items for x in seq) else -1
        return len(seq) - 1 - last
    wreads(0)
    for n in range(28):
        if n+3 < 28:
            w2_dma(n+3); seq += [("w",n+3)]*2
            a_ld(n+3); seq += [("a",n+3)]*2
        items = [("a", n)] + ([("w", n+1)] if n+1 < 28 else [])
        a(f"  s_waitcnt vmcnt({need_wait(items)})")
        if n+1 < 28:
            wreads(n+1)
            a("  s_waitcnt lgkmcnt(4)")
        else:
            a("  s_waitcnt lgkmcnt(0)")
        b = WB + 8*(n & 1)
        for tb in range(2):
            for ct in range(2):
                mfma(ACC+16*(2*tb+ct), b+4*ct, AB+8*(n%4)+4*tb, "0" if n == 0 else None)
    stamp(5)
    lds_wait(C_FFN1, 4, 12)
    for q in range(4):
        Sk = uid("rw")
        a(f"""
  s_cmp_eq_u32 {sF}, {q}
  s_cbranch_scc1 {Sk}
  s_sub_u32 s12, {sF}, {q+1}
  s_and_b32 s12, s12, 3
  s_lshl_b32 s12, s12, 12
  s_add_u32 s12, s12, {LRED + q*12288}
  v_add_u32 v12, s12, {vL16}
""")
        for qd in range(4):
            a(f"  ds_write_b128 v12, {vr(ACC+16*q+4*qd,4)} offset:{qd*1024}")
        a.label(Sk)
    R_ = 40
    for q in range(4):
        Sk = uid("ro")
        a(f"  s_cmp_lg_u32 {sF}, {q}")
        a(f"  s_cbranch_scc1 {Sk}")
        for i in range(16): a(f"  v_mov_b32 v{R_+i}, v{ACC+16*q+i}")
        a(f"  v_and_b32 v36, 0xffff0000, v{32+2*(q>>1)}")
        a.label(Sk)
    a("  s_waitcnt lgkmcnt(0)")
    lds_inc(C_RA, 12)
    lds_wait(C_RA, 4, 12)
    a(f"""
  s_mul_i32 s12, {sF}, 12288
  s_add_u32 s12, s12, {LRED}
  v_add_u32 v12, s12, {vL16}
""")
    for sl in range(3):
        for qd in range(4):
            a(f"  ds_read_b128 {vr(ACC+16*sl+4*qd,4)}, v12 offset:{sl*4096+qd*1024}")
    a("  s_waitcnt lgkmcnt(0)")
    lds_inc(C_RB, 12)
    for i in range(16):
        a(f"  v_add_f32 v{R_+i}, v{R_+i}, v{ACC+i}")
        a(f"  v_add_f32 v{ACC+16+i}, v{ACC+16+i}, v{ACC+32+i}")
    for i in range(16):
        a(f"  v_add_f32 v{R_+i}, v{R_+i}, v{ACC+16+i}")
    for i in range(16):
        a(f"  v_mul_f32 v{R_+i}, v{R_+i}, v36")
    lds_wait(C_RB, 4, 12)
    a(f"""
  s_mul_i32 s12, {sF}, 7168
  s_lshl_b32 s13, {sF}, 10
""")
    for i in range(15):
        a(f"""
  s_add_u32 m0, s13, {LWOS + i*4096}
  buffer_load_dwordx4 v24, {WO_}, s12 offen lds
  s_add_u32 s12, s12, {4*7168}
""")
    sTB = "s72"
    a(f"""
  s_lshr_b32 s12, {sF}, 1
  s_add_u32 {sTB}, {sTB0}, s12
  v_and_b32 v12, 15, {vLANE}
  s_lshl_b32 s12, {sTB}, 4
  v_add_u32 v12, s12, v12
  v_lshlrev_b32 v12, 4, v12
  v_add_u32 v12, {FLAGO}, v12
  s_mul_i32 s12, {sTB}, 147456
  s_add_u32 s73, s12, {AF + 112*1024}
  s_bitcmp1_b32 {sF}, 0
  s_cbranch_scc0 L_ct0
  v_mov_b32 v22, v23
L_ct0:
  s_lshl_b32 s12, {sTB}, 5
  v_add_u32 v13, s12, {vT}
  v_mul_u32_u24 v13, 896, v13
  v_lshl_add_u32 v13, {vH}, 4, v13
  s_lshl_b32 s12, {sR7}, 7
  s_and_b32 s13, {sF}, 1
  s_lshl_b32 s13, s13, 6
  s_add_u32 s12, s12, s13
  v_add_u32 v26, s12, v13
  s_waitcnt vmcnt(0)
""")
    lds_inc(C_RC, 14)
    lds_wait(C_RC, 4, 14)
    WF = 64
    def woreads(n):
        row0 = 28*(n >> 1) + 16*(n & 1)
        for hf in range(2):
            a(f"  ds_read_b64_tr_b16 {vr(WF+4*(n%8)+2*hf,2)}, v22 offset:{LWOS + (row0+8*hf)*128}")
    for n in range(6): woreads(n)
    stamp(6)
    poll_ws(["v12"], 14)
    stamp(7)
    OB = 128
    for n in range(32):
        if n % 4 == 0 and n > 0: a(f"  s_add_u32 s73, s73, 4096")
        a(f"  buffer_load_dwordx4 {vr(OB+4*n,4)}, {vL16}, {WS_}, s73 offen offset:{(n%4)*1024} sc1")
    for n in range(32):
        if n+6 < 32:
            woreads(n+6)
            a(f"  s_waitcnt vmcnt({31-n}) lgkmcnt(12)")
        else:
            a(f"  s_waitcnt vmcnt({31-n}) lgkmcnt({2*(31-n)})")
        mfma(R_, WF+4*(n%8), OB+4*n)
    Pq = 64
    for i in range(8): a(f"  v_cvt_pk_bf16_f32 v{Pq+i}, v{R_+2*i}, v{R_+2*i+1}")
    for half in range(2):
        q = Pq + 4*half
        a(f"""
  v_permlane32_swap_b32 v{q}, v{q+2}
  v_permlane32_swap_b32 v{q+1}, v{q+3}
""")
    a(f"""
  buffer_store_dwordx4 {vr(Pq,4)}, v26, {OUT_}, 0 offen
  buffer_store_dwordx4 {vr(Pq+4,4)}, v26, {OUT_}, 0 offen offset:32
""")
    if STAMP:
        a("  s_waitcnt vmcnt(0)")
        stamp(8)
        stamp_flush()
    a("  s_endpgm")

def gate_wg():
    a.label("L_gate")
    a(f"""
  s_lshl_b32 s12, {sXCD}, 2
  s_add_u32 s12, s12, {sIDX}
  s_sub_u32 s12, s12, 28
  s_lshl_b32 s12, s12, 3
  s_add_u32 s12, s12, {sW}
  s_lshl_b32 s64, s12, 3
  s_mul_i32 s13, s64, 896
  v_add_u32 v10, s13, {vL16}
  v_mov_b32 v11, 0x7ffffff0
  v_cmp_gt_u32 vcc, 56, {vLANE}
  v_cndmask_b32 v10, v11, v10, vcc
  buffer_load_dwordx4 v[12:15], {vL16}, {GW_}, 0 offen
""")
    for r in range(8):
        so = "0" if r < 4 else "s13"
        if r == 4: a("  s_mov_b32 s13, 3584")
        a(f"  buffer_load_dwordx4 {vr(32+4*r,4)}, v10, {X_}, {so} offen offset:{896*(r%4)}")
    a(f"""
  s_cmp_lg_u32 {sW}, 0
  s_cbranch_scc1 L_g1
  v_mov_b32 v16, {C_FFN1}
  v_mov_b32 v17, 4
  ds_write_b32 v16, v17
L_g1:
  s_waitcnt vmcnt(8) lgkmcnt(0)
""")
    get_tag()
    a("  s_barrier")
    for i in range(4):
        a(f"  v_lshlrev_b32 v{16+2*i}, 16, v{12+i}")
        a(f"  v_and_b32 v{17+2*i}, 0xffff0000, v{12+i}")
    a("  s_waitcnt vmcnt(0)")
    for r in range(8):
        acc = 64 + r
        for i in range(4):
            x = 32 + 4*r + i
            a(f"""
  v_lshlrev_b32 v24, 16, v{x}
  v_and_b32 v25, 0xffff0000, v{x}
  v_mul_f32 v24, v24, v{16+2*i}
  v_mul_f32 v25, v25, v{17+2*i}
  v_cvt_pk_bf16_f32 v24, v24, v25
  v_lshlrev_b32 v25, 16, v24
  v_and_b32 v24, 0xffff0000, v24
""")
            if i == 0: a(f"  v_add_f32 v{acc}, v24, v25")
            else:
                a(f"  v_add_f32 v{acc}, v{acc}, v25")
                a(f"  v_add_f32 v{acc}, v{acc}, v24")
    for mod in ("row_shr:1", "row_shr:2", "row_shr:4", "row_shr:8", "row_bcast:15 row_mask:0xa", "row_bcast:31 row_mask:0xc"):
        for r in range(8):
            a(f"  v_add_f32_dpp v{64+r}, v{64+r}, v{64+r} {mod}")
    a("  v_mov_b32 v24, 0")
    for r in range(8):
        a(f"  v_readlane_b32 s{66+r}, v{64+r}, 63")
    for r in range(8):
        a(f"  v_writelane_b32 v24, s{66+r}, {r}")
    a(f"""
  v_cvt_pk_bf16_f32 v24, v24, v24
  v_and_b32 v24, 0xffff0000, v24
  v_mul_f32 v24, {f2u(-math.log2(math.e))}, v24
  v_exp_f32 v24, v24
  v_add_f32 v24, 1.0, v24
  v_rcp_f32 v24, v24
  v_cvt_pk_bf16_f32 v24, v24, v24
  v_and_b32 v25, 0xffff0000, v24
  v_sub_f32 v25, 1.0, v25
  v_cvt_pk_bf16_f32 v25, v25, v25
  v_and_b32 v24, 0xffff, v24
  v_and_b32 v25, 0xffff0000, v25
  v_or_b32 v24, v24, v25
  v_mov_b32 v25, {sTAG}
  s_lshl_b32 s12, s64, 3
  s_add_u32 s12, s12, {GATE}
  v_lshl_add_u32 v26, {vLANE}, 3, s12
  s_mov_b64 exec, 0xff
  buffer_store_dwordx2 v[24:25], v26, {WS_}, 0 offen sc1
  s_mov_b64 exec, -1
  s_cmp_lt_u32 {sW}, 4
  s_cbranch_scc1 L_attn
  s_cmp_lg_u32 {sW}, 7
  s_cbranch_scc1 L_end
""")
    arrive_epoch()
    a("  s_branch L_end")

hdr = f"""; gated mix of MHA(16 heads, dh 28) and SiLU FFN, S=2048 D=448 F=1792 -- persistent single launch, generated by gen/gen.py
; @launch grid=(256,1,1) block=(512,1,1) lds={LDS_SIZE}
.amdgcn_target "amdgcn-amd-amdhsa--gfx950"
.text
.globl {NAME}_kernel
.p2align 8
.type {NAME}_kernel,@function
{NAME}_kernel:
"""
prologue()
a(f"  s_cmp_ge_u32 {sW}, 4")
a(f"  s_cbranch_scc1 L_fwave")
phaseQ_A()
attention()
fwave()
gate_wg()
a.label("L_end")
a("  s_endpgm")
body = a.finalize_fast(verbose="--v" in sys.argv)
ftr = f"""
.section .rodata,"a"
.p2align 6
.amdhsa_kernel {NAME}_kernel
  .amdhsa_next_free_vgpr 256
  .amdhsa_next_free_sgpr 102
  .amdhsa_accum_offset 256
  .amdhsa_group_segment_fixed_size 0
  .amdhsa_kernarg_size 80
  .amdhsa_user_sgpr_count 2
  .amdhsa_user_sgpr_kernarg_segment_ptr 1
  .amdhsa_system_sgpr_workgroup_id_x 1
.end_amdhsa_kernel
"""
open(OUT, "w").write(hdr + body + ftr)
print("wrote", OUT, "lines", body.count("\n"), "pads", a.npad)
assert all((q*43691) >> 19 == q//12 for q in range(768))
assert all((c*2341) >> 16 == c//28 for c in range(448))
assert all((o*37) >> 8 == o//7 for o in range(56))
```
